```python
import torch

def _softmax(x, axis=-1):
    return torch.softmax(x, dim=axis)
def _gelu(x):
    return torch.nn.functional.gelu(x, approximate="tanh")
def _silu(x):
    return torch.nn.functional.silu(x)
def _sigmoid(x):
    return torch.sigmoid(x)
def _layernorm(x, axis=-1, eps=1e-5):
    m = x.mean(dim=axis, keepdim=True)
    v = x.var(dim=axis, keepdim=True, unbiased=False)
    return (x - m) / torch.sqrt(v + eps)
def _scatter_add(tgt, idx, src, axis=0):
    return tgt.clone().index_add_(axis, idx, src)
def _segment_sum(src, seg, n):
    out = torch.zeros((n,) + src.shape[1:], dtype=src.dtype)
    return out.index_add_(0, seg, src)
def _pad(x, pw):
    flat = tuple(v for pair in reversed(pw) for v in pair)
    return torch.nn.functional.pad(x, flat)

kernel_name = 'sequential_preLN__ssm_conv_h3__dense_activation_squared_relu__prompt'

def setup_inputs():

    _w = (lambda a: (lambda t: t.to(torch.bfloat16) if t.is_floating_point() else t)(torch.as_tensor(a)))
    def _A_setup():
        B, S, D = 1, 2048, 1024
        ks = 4
        return {
            "q": _w((lambda *s: torch.randn(*s, dtype=torch.bfloat16) * 0.05)(B, S, D)),
            "k": _w((lambda *s: torch.randn(*s, dtype=torch.bfloat16) * 0.4)(B, S, D)),
            "v": _w((lambda *s: torch.randn(*s, dtype=torch.bfloat16) * 0.4)(B, S, D)),
            "shift_k": _w((lambda *s: torch.randn(*s, dtype=torch.bfloat16) * 0.4)(D, ks) * 0.5),
            "ssm_k": _w((lambda *s: torch.randn(*s, dtype=torch.bfloat16) * 0.4)(D, S) * (1.0 / S ** 0.5)),
            "ssm_D": _w((lambda *s: torch.randn(*s, dtype=torch.bfloat16) * 0.4)(D)),
        }
    _A_in = _A_setup()

    def _B_setup():
        B, S, D, F = 1, 2048, 1024, 3584
        return {
            "x": _w((lambda *s: torch.randn(*s, dtype=torch.bfloat16) * 0.05)(B, S, D)),
            "w1": _w((lambda *s: torch.randn(*s, dtype=torch.bfloat16) * 0.05)(D, F)),
            "b1": _w((lambda *s: torch.randn(*s, dtype=torch.bfloat16) * 0.4)(F)),
            "w2": _w((lambda *s: torch.randn(*s, dtype=torch.bfloat16) * 0.05)(F, D)),
            "b2": _w((lambda *s: torch.randn(*s, dtype=torch.bfloat16) * 3.2)(D)),
        }
    _B_in = _B_setup()

    return {
        "A_q": _A_in["q"],
        "A_k": _A_in["k"],
        "A_v": _A_in["v"],
        "A_shift_k": _A_in["shift_k"],
        "A_ssm_k": _A_in["ssm_k"],
        "A_ssm_D": _A_in["ssm_D"],
        "B_x": _B_in["x"],
        "B_w1": _B_in["w1"],
        "B_b1": _B_in["b1"],
        "B_w2": _B_in["w2"],
        "B_b2": _B_in["b2"],
    }

def reference(A_q, A_k, A_v, A_shift_k, A_ssm_k, A_ssm_D, B_x, B_w1, B_b1, B_w2, B_b2):
    def _A_ref(q, k, v, shift_k, ssm_k, ssm_D):
        B, S, D = q.shape
        ks = shift_k.shape[-1]
        k_pad = _pad(k, ((0, 0), (ks - 1, 0), (0, 0)))
        k_shift = torch.zeros_like(k)
        for t in range(ks):
            k_shift = k_shift + k_pad[:, t:t + S, :] * shift_k[:, ks - 1 - t][None, None, :]
        kv = k_shift * v
        L = 2 * S
        kv_pad = _pad(kv, ((0, 0), (0, S), (0, 0)))
        kf_pad = _pad(ssm_k, ((0, 0), (0, S)))
        kv_f = (lambda x, axes=(-2,-1): torch.fft.rfft2(x.float(), dim=axes))(kv_pad[:, None, :, :], axes=(1, 2))
        kf_f = (lambda x, axes=(-2,-1): torch.fft.rfft2(x.float(), dim=axes))(kf_pad[:, None, :], axes=(1, 2))
        kf_f = (lambda x, *d: x.permute(*d))(kf_f, 1, 2, 0)
        y_f = kv_f * kf_f[None, :, :, :]
        y = (lambda x, s, axes=(-2,-1): torch.fft.irfft2(x, s=s, dim=axes).to(torch.bfloat16))(y_f, (1, L), axes=(1, 2))[:, 0, :S, :]
        y = y + kv * ssm_D[None, None, :]
        return q * y

    def _B_ref(x, w1, b1, w2, b2):
        h = torch.einsum("bsd,df->bsf", x, w1) + b1
        zero = torch.zeros_like(h)
        r = torch.where(h > zero, h, zero)
        h = r * r
        out = torch.einsum("bsf,fd->bsd", h, w2) + b2
        return out

    x = A_q
    h = x + _A_ref(_layernorm(x, axis=-1), A_k, A_v, A_shift_k, A_ssm_k, A_ssm_D)
    h2 = h + _B_ref(_layernorm(h, axis=-1), B_w1, B_b1, B_w2, B_b2)
    return h2
```

```python
import re

class Asm:
    def __init__(self):
        self.lines = []
    def __call__(self, s):
        for l in s.split("\n"):
            l = l.rstrip()
            if l.strip():
                self.lines.append(l if l.strip().endswith(":") or l.startswith(".") else "    " + l.strip())
    def label(self, name):
        self.lines.append(name + ":")
    def c(self, s):
        self.lines.append("    ; " + s)
    def text(self):
        return "\n".join(self.lines) + "\n"

def v(a, n=1):
    return f"v{a}" if n == 1 else f"v[{a}:{a+n-1}]"
def s(a, n=1):
    return f"s{a}" if n == 1 else f"s[{a}:{a+n-1}]"
def a_(a, n=1):
    return f"a{a}" if n == 1 else f"a[{a}:{a+n-1}]"

_reg = re.compile(r"^(-|abs\()?([vsa])(?:(\d+)|\[(\d+):(\d+)\])\)?$")
def regs(tok):
    tok = tok.strip()
    if tok in ("vcc", "exec"):
        return {(tok, 0)}
    if tok in ("vcc_lo", "vcc_hi"): return {("vcc", 0)}
    if tok == "m0": return {("m0", 0)}
    m = _reg.match(tok)
    if not m: return set()
    k = m.group(2)
    if m.group(3) is not None:
        return {(k, int(m.group(3)))}
    return {(k, i) for i in range(int(m.group(4)), int(m.group(5)) + 1)}

TRANS = ("v_exp_f32", "v_log_f32", "v_rcp_f32", "v_rsq_f32", "v_sqrt_f32", "v_sin_f32", "v_cos_f32", "v_rcp_iflag_f32")

class I:
    def __init__(self, text):
        self.text = text
        t = text.split(";")[0].strip()
        parts = t.split(None, 1)
        self.mn = parts[0]
        rest = parts[1] if len(parts) > 1 else ""
        ops, depth, cur = [], 0, ""
        for ch in rest:
            if ch == "[": depth += 1
            if ch == "]": depth -= 1
            if ch == "," and depth == 0:
                ops.append(cur.strip()); cur = ""
            else: cur += ch
        if cur.strip(): ops.append(cur.strip())
        self.mods = ""
        if ops:
            last = ops[-1].split(None, 1)
            ops[-1] = last[0]
            if len(last) > 1: self.mods = last[1]
        self.ops = ops
        mn = self.mn
        self.is_mfma = mn.startswith("v_mfma")
        self.is_valu = mn.startswith("v_") and not self.is_mfma
        self.is_vmem = mn.startswith(("buffer_", "global_", "flat_"))
        self.is_ds = mn.startswith("ds_")
        self.is_salu = mn.startswith("s_")
        self.is_dpp = "_dpp" in mn or "row_" in self.mods or "quad_perm" in self.mods
        self.is_lds_dma = self.is_vmem and re.search(r"\blds\b", self.mods) is not None
        self.w, self.r = set(), set()
        R = [regs(o) for o in ops]
        allr = set().union(*R) if R else set()
        if self.is_mfma:
            self.w = R[0]; self.r = R[1] | R[2] | R[3]; self.srcc = R[3]; self.srcab = R[1] | R[2]
        elif self.is_valu:
            if mn.startswith("v_cmp"):
                self.w = R[0]; self.r = set().union(*R[1:])
            elif mn.startswith(("v_permlane16_swap", "v_permlane32_swap", "v_swap")):
                self.w = R[0] | R[1]; self.r = R[0] | R[1]
            elif mn.startswith(("v_add_co", "v_sub_co", "v_addc_co", "v_subb_co")):
                self.w = R[0] | R[1]; self.r = set().union(*R[2:])
            else:
                self.w = R[0]; self.r = set().union(*R[1:]) if len(R) > 1 else set()
                if mn.startswith(("v_fmac", "v_dot2c", "v_writelane")) or self.is_dpp: self.r |= R[0]
                if mn.startswith("v_cndmask") and len(ops) == 3: self.r |= {("vcc", 0)}
        elif self.is_vmem:
            if self.is_lds_dma:
                self.r = allr | {("m0", 0)}
            elif "store" in mn or "atomic" in mn:
                self.r = allr
                self.store_data = R[0] if mn.startswith("buffer") else R[1]
            elif mn.startswith(("buffer_wbl2", "buffer_inv")):
                pass
            else:
                self.w = R[0]; self.r = set().union(*R[1:])
        elif self.is_ds:
            if "write" in mn: self.r = allr
            else: self.w = R[0]; self.r = set().union(*R[1:])
        elif self.is_salu:
            if mn.startswith(("s_cmp", "s_cbranch", "s_branch", "s_waitcnt", "s_barrier", "s_nop", "s_endpgm", "s_setprio", "s_sleep", "s_bitcmp")):
                self.r = allr
            else:
                self.w = R[0] if R else set(); self.r = set().union(*R[1:]) if len(R) > 1 else set()
                if "saveexec" in mn: self.w |= {("exec", 0)}
    def states(self):
        if self.mn == "s_nop": return int(self.ops[0], 0) + 1
        return 1

def lint(text):
    ins, labels = [], {}
    for l in text.split("\n"):
        t = l.split(";")[0].strip()
        if not t or t.startswith("."): continue
        if t.endswith(":"):
            labels[t[:-1]] = len(ins); continue
        ins.append(I(t))
    def succ(i):
        x = ins[i]
        if x.mn == "s_endpgm": return []
        if x.mn == "s_branch": return [labels[x.ops[0]]]
        out = [i + 1] if i + 1 < len(ins) else []
        if x.mn.startswith("s_cbranch"): out.append(labels[x.ops[0]])
        return out
    probs = []
    def vg(S): return {r for r in S if r[0] in "va"}
    def sg(S): return {r for r in S if r[0] in ("s", "vcc")}
    for i, p in enumerate(ins):
        rules = []
        if p.is_valu:
            wv, ws = vg(p.w), sg(p.w)
            if wv:
                rules.append((2, lambda c, wv=wv: c.is_mfma and (c.r & wv), "VALU->MFMA"))
                rules.append((2, lambda c, wv=wv: c.is_valu and c.is_dpp and (c.r & wv), "VALU->DPP"))
                rules.append((2, lambda c, wv=wv: c.mn.startswith("v_permlane") and (c.r & wv), "VALU->permlane"))
                rules.append((1, lambda c, wv=wv: c.mn.startswith(("v_readlane", "v_readfirstlane")) and (c.r & wv), "VALU->readlane"))
                if p.mn.startswith(TRANS):
                    rules.append((1, lambda c, wv=wv: c.is_valu and not c.mn.startswith(TRANS) and (c.r & wv), "trans->VALU"))
                if "sdwa" in p.mn or "op_sel" in p.mods and not p.mn.startswith("v_pk"):
                    rules.append((1, lambda c, wv=wv: c.is_valu and (c.r & wv), "opsel->VALU"))
            if ws:
                rules.append((5, lambda c, ws=ws: c.is_vmem and (c.r & ws), "VALU sgpr->VMEM"))
                rules.append((2, lambda c, ws=ws: c.is_valu and (c.r & ws), "VALU sgpr->VALU"))
                rules.append((4, lambda c, ws=ws: c.mn.startswith(("v_readlane", "v_writelane")) and (regs(c.ops[2]) & ws), "VALU sgpr->lanesel"))
                rules.append((1, lambda c, ws=ws: c.is_salu and (c.r & ws), "VALU sgpr->SALU(pad)"))
        if p.is_salu and ("m0", 0) in p.w:
            rules.append((1, lambda c: c.is_lds_dma, "m0->ldsdma"))
        if p.is_salu and ("exec", 0) in p.w:
            pass
        if p.is_mfma:
            big = "32x32" in p.mn
            n = 12 if big else 8
            rules.append((n, lambda c, w=p.w: (not c.is_mfma) and (c.is_valu or c.is_vmem or c.is_ds) and ((c.r | c.w) & w), "MFMA D->VALU/mem"))
            rules.append((n, lambda c, w=p.w: c.is_mfma and (c.srcab & w), "MFMA D->MFMA AB"))
            rules.append((10 if big else 6, lambda c, w=p.w: c.is_mfma and (c.srcc & w) and c.srcc != w, "MFMA D->MFMA C overlap"))
            rules.append((7 if big else 3, lambda c, w=p.srcc: c.is_valu and (c.w & w), "MFMA C WAR"))
        if p.is_vmem and "store" in p.mn and ("x4" in p.mn or "x3" in p.mn):
            rules.append((2, lambda c, d=p.store_data: c.is_valu and (c.w & d), "store data WAR"))
            rules.append((1, lambda c, d=p.store_data: (c.w & d), "store data WAR1"))
        for need, pred, name in rules:
            stack = [(j, 0) for j in succ(i)]
            seen = set()
            while stack:
                j, d = stack.pop()
                if d >= need or (j, d) in seen: continue
                seen.add((j, d))
                c = ins[j]
                if pred(c):
                    probs.append(f"{name}: need {need} have {d}: [{p.text}] -> [{c.text}]")
                    continue
                for k in succ(j): stack.append((k, d + c.states()))
    return probs

KD = """.section .rodata,"a"
.p2align 6
.amdhsa_kernel {name}
  .amdhsa_next_free_vgpr {vgpr}
  .amdhsa_next_free_sgpr {sgpr}
  .amdhsa_accum_offset {acc}
  .amdhsa_group_segment_fixed_size 0
  .amdhsa_kernarg_size 112
  .amdhsa_user_sgpr_count 2
  .amdhsa_user_sgpr_kernarg_segment_ptr 1
  .amdhsa_system_sgpr_workgroup_id_x 1
.end_amdhsa_kernel
"""
```

```python
from asmlib import *

WS_UT = 0
WS_XT = 4 << 20
WS_HT = 8 << 20
WS_ST1 = 12 << 20
WS_CS = (12 << 20) + (64 << 10)
WS_W1P = 13 << 20
WS_H1P = 21 << 20
OFF = dict(q=0, k=8, v=16, sk=24, ssk=32, sD=40, w1=56, b1=64, w2=72, b2=80, out=88, dbg=96, ws=104)

def srd(A, d, p, size, off=None):
    if off is None:
        A(f"s_mov_b32 s{d}, s{p}\ns_mov_b32 s{d+1}, s{p+1}")
    else:
        A(f"s_add_u32 s{d}, s{p}, {off}\ns_addc_u32 s{d+1}, s{p+1}, 0")
    A(f"s_mov_b32 s{d+2}, {size}\ns_mov_b32 s{d+3}, 0x20000")

def unpack_lo(A, d, srcv): A(f"v_lshlrev_b32 v{d}, 16, v{srcv}")
def unpack_hi(A, d, srcv): A(f"v_and_b32 v{d}, 0xffff0000, v{srcv}")

def wave_reduce(A, rs):
    steps = ["row_shr:1 row_mask:0xf bank_mask:0xf bound_ctrl:0", "row_shr:2 row_mask:0xf bank_mask:0xf bound_ctrl:0",
             "row_shr:4 row_mask:0xf bank_mask:0xf bound_ctrl:0", "row_shr:8 row_mask:0xf bank_mask:0xf bound_ctrl:0",
             "row_bcast:15 row_mask:0xa bank_mask:0xf", "row_bcast:31 row_mask:0xc bank_mask:0xf"]
    for st in steps:
        pad = 2 - (len(rs) - 1)
        if pad > 0: A(f"s_nop {pad-1}")
        for r in rs:
            A(f"v_add_f32_dpp v{r}, v{r}, v{r} {st}")

K1_LDS = 32768
def gen_k1(name):
    A = Asm()
    A.label(name)
    A(f"""s_cmp_ge_u32 s2, 256
s_cbranch_scc1 {name}_end
s_load_dwordx4 s[4:7], s[0:1], 0
s_load_dwordx4 s[8:11], s[0:1], 16
s_load_dwordx2 s[12:13], s[0:1], 104
v_lshrrev_b32 v2, 6, v0
v_and_b32 v1, 63, v0
v_readfirstlane_b32 s14, v2
s_and_b32 s15, s2, 7
s_lshr_b32 s16, s2, 3
v_and_b32 v3, 15, v1
v_lshrrev_b32 v4, 4, v1
s_and_b32 s17, s14, 1
s_lshr_b32 s18, s14, 1
s_and_b32 s18, s18, 1
s_lshl_b32 s19, s15, 7
s_lshl_b32 s17, s17, 6
s_add_u32 s19, s19, s17
s_lshl_b32 s52, s16, 6
s_lshl_b32 s53, s18, 5
s_add_u32 s52, s52, s53
v_lshl_add_u32 v5, v3, 2, s19
v_lshl_add_u32 v6, v4, 3, s52
v_lshlrev_b32 v7, 11, v6
v_lshl_add_u32 v7, v5, 1, v7
s_mov_b32 s44, 4096
s_mov_b32 s45, 8192
s_mov_b32 s46, 12288""")
    A("""v_lshl_add_u32 v8, v3, 2, s17
v_lshlrev_b32 v8, 7, v8
s_lshl_b32 s53, s18, 2
v_add_u32 v9, s53, v4
v_and_b32 v10, 7, v3
v_xor_b32 v9, v9, v10
v_lshl_add_u32 v8, v9, 4, v8
s_waitcnt lgkmcnt(0)""")
    srd(A, 36, 12, 8 << 20)
    A(f"""s_cmp_ge_u32 s14, 4
s_cbranch_scc1 {name}_xw""")
    so = ["0", "s44", "s45", "s46"]
    srd(A, 20, 6, 4 << 20)
    srd(A, 24, 8, 4 << 20)
    srd(A, 32, 10, 8192)
    KR, VR, SKR = 16, 40, 56
    A(f"""v_subrev_u32 v11, 6144, v7
v_subrev_u32 v12, 2048, v7
v_lshlrev_b32 v13, 3, v5
buffer_load_dwordx4 v[{SKR}:{SKR+3}], v13, s[32:35], 0 offen
buffer_load_dwordx4 v[{SKR+4}:{SKR+7}], v13, s[32:35], 0 offen offset:16
buffer_load_dwordx2 v[{KR}:{KR+1}], v11, s[20:23], 0 offen
buffer_load_dwordx2 v[{KR+2}:{KR+3}], v11, s[20:23], 0 offen offset:2048
buffer_load_dwordx2 v[{KR+4}:{KR+5}], v12, s[20:23], 0 offen""")
    for i in range(8):
        A(f"buffer_load_dwordx2 v[{KR+6+2*i}:{KR+7+2*i}], v7, s[20:23], {so[i>>1]} offen offset:{2048*(i&1)}")
    for i in range(8):
        A(f"buffer_load_dwordx2 v[{VR+2*i}:{VR+2*i+1}], v7, s[24:27], {so[i>>1]} offen offset:{2048*(i&1)}")
    SKF, KF, ACC, VF = 64, 80, 124, 156
    A("s_waitcnt vmcnt(19)")
    for j in range(4):
        for p in range(2):
            for e in range(2):
                src = SKR + 2 * (2 * p + e) + (j >> 1)
                (unpack_hi if j & 1 else unpack_lo)(A, SKF + 4 * j + 2 * p + e, src)
    for rho in range(11):
        A(f"s_waitcnt vmcnt({18 - rho})")
        for p in range(2):
            unpack_lo(A, KF + 4 * rho + 2 * p, KR + 2 * rho + p)
            unpack_hi(A, KF + 4 * rho + 2 * p + 1, KR + 2 * rho + p)
        row = rho - 3
        if row >= 0:
            for p in range(2):
                d = ACC + 4 * row + 2 * p
                A(f"v_pk_mul_f32 v[{d}:{d+1}], v[{KF+4*(row+3)+2*p}:{KF+4*(row+3)+2*p+1}], v[{SKF+2*p}:{SKF+2*p+1}]")
                for j in range(1, 4):
                    k_ = KF + 4 * (row + 3 - j) + 2 * p
                    A(f"v_pk_fma_f32 v[{d}:{d+1}], v[{k_}:{k_+1}], v[{SKF+4*j+2*p}:{SKF+4*j+2*p+1}], v[{d}:{d+1}]")
    for row in range(8):
        A(f"s_waitcnt vmcnt({7 - row})")
        for p in range(2):
            unpack_lo(A, VF + 2 * p, VR + 2 * row + p)
            unpack_hi(A, VF + 2 * p + 1, VR + 2 * row + p)
        for p in range(2):
            d = ACC + 4 * row + 2 * p
            A(f"v_pk_mul_f32 v[{d}:{d+1}], v[{d}:{d+1}], v[{VF+2*p}:{VF+2*p+1}]")
    OUT = 16
    for i in range(4):
        for t in range(4):
            A(f"v_cvt_pk_bf16_f32 v{OUT+4*i+t}, v{ACC+4*(7-2*t)+i}, v{ACC+4*(6-2*t)+i}")
        A(f"ds_write_b128 v8, v[{OUT+4*i}:{OUT+4*i+3}] offset:{128*i}")
    A(f"s_branch {name}_join")
    A.label(f"{name}_xw")
    srd(A, 28, 4, 4 << 20)
    srd(A, 40, 12, 16384, WS_ST1)
    QR, SR = 16, 32
    A(f"""s_sub_u32 s54, s14, 4
s_lshl_b32 s55, s2, 3
s_lshl_b32 s54, s54, 1
s_add_u32 s54, s54, s55
s_lshl_b32 s55, s54, 11
v_lshlrev_b32 v11, 4, v1""")
    for rr in range(2):
        for j in range(2):
            A(f"buffer_load_dwordx4 v[{SR+8*rr+4*j}:{SR+8*rr+4*j+3}], v11, s[28:31], s55 offen offset:{2048*rr+1024*j}")
    for i in range(8):
        A(f"buffer_load_dwordx2 v[{QR+2*i}:{QR+2*i+1}], v7, s[28:31], {so[i>>1]} offen offset:{2048*(i&1)}")
    A("""s_mov_b32 s56, 0x05040100
s_mov_b32 s57, 0x07060302
v_add_u32 v8, 16384, v8""")
    XF = 64
    S0, S1 = 100, 101
    A("s_waitcnt vmcnt(8)")
    for rr in range(2):
        for j in range(8):
            unpack_lo(A, XF + 16 * rr + 2 * j, SR + 8 * rr + j)
            unpack_hi(A, XF + 16 * rr + 2 * j + 1, SR + 8 * rr + j)
    T = 104
    for rr in range(2):
        b = XF + 16 * rr
        t = T + 8 * rr
        for j in range(4):
            A(f"v_pk_add_f32 v[{t+2*j}:{t+2*j+1}], v[{b+4*j}:{b+4*j+1}], v[{b+4*j+2}:{b+4*j+3}]")
        A(f"v_pk_add_f32 v[{t}:{t+1}], v[{t}:{t+1}], v[{t+2}:{t+3}]")
        A(f"v_pk_add_f32 v[{t+4}:{t+5}], v[{t+4}:{t+5}], v[{t+6}:{t+7}]")
        A(f"v_pk_add_f32 v[{t}:{t+1}], v[{t}:{t+1}], v[{t+4}:{t+5}]")
        A(f"v_add_f32 v{S0+rr}, v{t}, v{t+1}")
    A("s_nop 0")
    wave_reduce(A, [S0, S1])
    A(f"""s_nop 0
v_readlane_b32 s58, v{S0}, 63
v_readlane_b32 s59, v{S1}, 63
s_mov_b32 s60, 0x3a800000
s_nop 0
v_mov_b32 v{S0}, s58
v_mov_b32 v{S1}, s59
v_mul_f32 v102, s60, v{S0}
v_mul_f32 v103, s60, v{S1}""")
    for rr in range(2):
        b = XF + 16 * rr
        t = T + 8 * rr
        for j in range(8):
            A(f"v_pk_add_f32 v[{b+2*j}:{b+2*j+1}], v[{b+2*j}:{b+2*j+1}], v[102:103] op_sel:[0,{rr}] op_sel_hi:[1,{rr}] neg_lo:[0,1] neg_hi:[0,1]")
        A(f"v_pk_mul_f32 v[{t}:{t+1}], v[{b}:{b+1}], v[{b}:{b+1}]")
        A(f"v_pk_mul_f32 v[{t+2}:{t+3}], v[{b+2}:{b+3}], v[{b+2}:{b+3}]")
        for j in range(2, 8):
            tt = t + 2 * (j & 1)
            A(f"v_pk_fma_f32 v[{tt}:{tt+1}], v[{b+2*j}:{b+2*j+1}], v[{b+2*j}:{b+2*j+1}], v[{tt}:{tt+1}]")
        A(f"v_pk_add_f32 v[{t}:{t+1}], v[{t}:{t+1}], v[{t+2}:{t+3}]")
        A(f"v_add_f32 v{S0+rr}, v{t}, v{t+1}")
    A("s_nop 0")
    wave_reduce(A, [S0, S1])
    A(f"""s_nop 0
v_readlane_b32 s58, v{S0}, 63
v_readlane_b32 s59, v{S1}, 63
v_cmp_eq_u32 vcc, 1, v1
s_nop 0
v_mov_b32 v{S0}, s58
v_mov_b32 v{S1}, s59
v_cndmask_b32 v{S0}, v{S0}, v{S1}, vcc
v_cndmask_b32 v102, v102, v103, vcc
v_mul_f32 v{S0}, s60, v{S0}
v_cvt_pk_bf16_f32 v104, v102, v{S0}
v_lshlrev_b32 v105, 16, v104
v_and_b32 v106, 0xffff0000, v104
v_add_f32 v106, 0x3727c5ac, v106
v_cvt_pk_bf16_f32 v106, v106, v106
v_lshlrev_b32 v106, 16, v106
v_sqrt_f32 v106, v106
s_nop 0
v_cvt_pk_bf16_f32 v106, v106, v106
v_lshlrev_b32 v106, 16, v106
v_rcp_f32 v106, v106
v_add_u32 v107, s54, v1
v_lshlrev_b32 v107, 2, v107
v_cmp_gt_u32 vcc, 2, v1
s_and_saveexec_b64 s[62:63], vcc
s_mov_b32 s61, 8192
buffer_store_dword v105, v107, s[40:43], 0 offen
buffer_store_dword v106, v107, s[40:43], s61 offen
s_mov_b64 exec, s[62:63]""")
    OUT = 64
    A("s_waitcnt vmcnt(2)")
    for i in range(4):
        for t in range(4):
            A(f"v_perm_b32 v{OUT+4*i+t}, v{QR+2*(2*t+1)+(i>>1)}, v{QR+2*(2*t)+(i>>1)}, s{56+(i&1)}")
        A(f"ds_write_b128 v8, v[{OUT+4*i}:{OUT+4*i+3}] offset:{128*i}")
    A.label(f"{name}_join")
    A(f"""s_lshl_b32 s53, s14, 12
v_lshl_add_u32 v9, v1, 4, s53
s_lshr_b32 s53, s14, 2
s_lshl_b32 s53, s53, 22
s_and_b32 s54, s14, 3
s_lshl_b32 s54, s54, 5
s_lshl_b32 s55, s15, 7
s_add_u32 s54, s54, s55
s_lshl_b32 s54, s54, 12
s_add_u32 s53, s53, s54
s_lshl_b32 s54, s16, 7
s_add_u32 s53, s53, s54
v_lshrrev_b32 v10, 3, v1
v_lshlrev_b32 v10, 12, v10
v_and_b32 v11, 7, v1
v_lshrrev_b32 v12, 5, v1
v_xor_b32 v11, v11, v12
v_lshl_add_u32 v10, v11, 4, v10
s_waitcnt lgkmcnt(0)
s_barrier""")
    for j in range(4):
        A(f"ds_read_b128 v[{16+4*j}:{19+4*j}], v9 offset:{1024*j}")
    for j in range(1, 4):
        A(f"v_xor_b32 v{10+j}, {32*j}, v10")
    for j in range(4):
        A(f"s_waitcnt lgkmcnt({3-j})")
        A(f"buffer_store_dwordx4 v[{16+4*j}:{19+4*j}], v{10+j}, s[36:39], s53 offen")
        if j < 3: A("s_add_u32 s53, s53, 32768")
    A.label(f"{name}_end")
    A("s_endpgm")
    return A.text(), 160

KP = 4160
CW = 4 * KP + 4608
K2_ST = 4 * CW
K2_W1S = K2_ST + 16384
K2_P = K2_W1S + 32768
K2_LDS = K2_P + 4096
def gen_k2(name):
    A = Asm()
    A.label(name)
    A(f"""s_cmp_ge_u32 s2, 256
s_cbranch_scc1 {name}_end
s_load_dwordx4 s[4:7], s[0:1], 32
s_load_dwordx2 s[8:9], s[0:1], 56
s_load_dwordx2 s[12:13], s[0:1], 104
v_lshrrev_b32 v2, 6, v0
v_and_b32 v1, 63, v0
v_readfirstlane_b32 s14, v2
v_and_b32 v3, 15, v1
v_lshrrev_b32 v4, 4, v1
v_lshlrev_b32 v5, 4, v1
s_cmp_ge_u32 s14, 4
s_cbranch_scc1 {name}_sp""")
    A(f"""s_and_b32 s15, s2, 7
s_lshr_b32 s16, s2, 3
s_lshl_b32 s15, s15, 7
s_lshl_b32 s16, s16, 2
s_add_u32 s15, s15, s16
s_add_u32 s15, s15, s14
s_lshl_b32 s16, s15, 12
s_mul_i32 s17, s14, {CW}
s_lshr_b32 s18, s15, 1
s_lshl_b32 s18, s18, 2
s_waitcnt lgkmcnt(0)
s_load_dword s19, s[6:7], s18""")
    srd(A, 20, 4, 4096, "s16")
    A(f"s_add_u32 s44, s16, {WS_UT}") ; srd(A, 24, 12, 4096, "s44")
    A(f"s_add_u32 s44, s16, {WS_XT}") ; srd(A, 28, 12, 4096, "s44")
    A(f"s_add_u32 s44, s16, {WS_HT}") ; srd(A, 32, 12, 4096, "s44")
    AR, PR, XR = 160, 176, 184
    A(f"""v_subrev_u32 v6, 8, v5
v_add_u32 v7, 1016, v5""")
    for it in range(4):
        A(f"buffer_load_dwordx4 v[{AR+4*it}:{AR+4*it+3}], v5, s[20:23], 0 offen offset:{1024*it}")
        if it == 0: A(f"buffer_load_dwordx2 v[{PR}:{PR+1}], v6, s[20:23], 0 offen")
        else: A(f"buffer_load_dwordx2 v[{PR+2*it}:{PR+2*it+1}], v7, s[20:23], 0 offen offset:{1024*(it-1)}")
    A(f"s_add_u32 m0, s17, {4*KP+512}\ns_nop 0")
    for it in range(4): A(f"buffer_load_dwordx4 v5, s[24:27], 0 offen offset:{1024*it} lds")
    A(f"s_add_u32 m0, s17, 32\ns_nop 0")
    for it in range(4): A(f"buffer_load_dwordx4 v5, s[20:23], 0 offen offset:{1024*it} lds")
    A(f"s_add_u32 m0, s17, {2*KP+36}\ns_nop 0")
    for it in range(4): A(f"buffer_load_dwordx4 v5, s[20:23], 0 offen offset:{1024*it} lds")
    A("""v_lshlrev_b32 v8, 5, v3
v_lshl_add_u32 v8, v4, 3, v8""")
    for j in range(8):
        A(f"buffer_load_dwordx2 v[{XR+2*j}:{XR+2*j+1}], v8, s[28:31], 0 offen offset:{512*j}")
    A(f"""v_mov_b32 v10, 0
v_mov_b32 v11, 0
v_lshlrev_b32 v9, 3, v1
s_add_u32 s44, s17, {4*KP}
v_add_u32 v9, s44, v9
ds_write_b64 v9, v[10:11]
v_lshrrev_b32 v9, 3, v1
v_mul_u32_u24 v9, {KP}, v9
v_and_b32 v12, 7, v1
v_lshl_add_u32 v9, v12, 2, v9
v_mov_b32 v12, {2*KP+32}
v_cmp_gt_u32 vcc, 32, v1
s_nop 1
v_cndmask_b32 v9, v12, v9, vcc
v_add_u32 v9, s17, v9
ds_write_b32 v9, v10""")
    A(f"""v_and_b32 v9, 3, v3
v_sub_u32 v9, 3, v9
v_mul_u32_u24 v13, {KP}, v9
v_lshrrev_b32 v9, 2, v3
v_lshl_add_u32 v13, v9, 3, v13
v_lshlrev_b32 v9, 4, v4
v_sub_u32 v13, v13, v9
s_add_u32 s44, s17, 56
v_add_u32 v13, s44, v13
v_lshlrev_b32 v14, 5, v3
v_add_u32 v14, v14, v9
s_add_u32 s44, s17, {4*KP+512-32}
v_add_u32 v14, s44, v14
s_add_u32 s44, s17, {KP+32}
v_add_u32 v15, s44, v5""")
    O1, O3 = 200, 216
    for it in range(4):
        A(f"s_waitcnt vmcnt({26 - 2*it})")
        W = [PR+2*it, PR+2*it+1, AR+4*it, AR+4*it+1, AR+4*it+2, AR+4*it+3]
        o1, o3 = O1 + 4 * it, O3 + 4 * it
        for q in range(4):
            A(f"v_alignbit_b32 v{o1+q}, v{W[q+2]}, v{W[q+1]}, 16")
        for q in range(4):
            A(f"v_alignbit_b32 v{o3+q}, v{W[q+1]}, v{W[q]}, 16")
        A(f"ds_write_b128 v15, v[{o1}:{o1+3}] offset:{1024*it}")
        A(f"ds_write_b128 v15, v[{o3}:{o3+3}] offset:{2*KP+1024*it}")
    ACC = 16
    SET = [48, 112 - 0]
    for j in range(32): A(f"v_mov_b32 v{ACC+j}, 0")
    A("s_waitcnt vmcnt(8) lgkmcnt(0)")
    def reads(st):
        F, G = SET[st], SET[st] + 32
        out = []
        for a in range(8):
            out.append(f"ds_read_b128 v[{G+4*a}:{G+4*a+3}], v14 offset:{512*a}")
            out.append(f"ds_read_b64 v[{F+4*a}:{F+4*a+1}], v13 offset:{512*a}")
            out.append(f"ds_read_b64 v[{F+4*a+2}:{F+4*a+3}], v13 offset:{512*a+8}")
        return out
    def mfmas(st):
        F, G = SET[st], SET[st] + 32
        prs = sorted([(a, b) for a in range(8) for b in range(8) if a + b <= 7], key=lambda ab: (max(ab), ab[0] + ab[1]))
        return [f"v_mfma_f32_16x16x32_bf16 v[{ACC+4*(a+b)}:{ACC+4*(a+b)+3}], v[{F+4*a}:{F+4*a+3}], v[{G+4*b}:{G+4*b+3}], v[{ACC+4*(a+b)}:{ACC+4*(a+b)+3}]" for a, b in prs]
    for r in reads(0): A(r)
    A("s_mov_b32 s45, 0")
    A.label(f"{name}_loop")
    for st in range(2):
        A("v_add_u32 v13, 64, v13\nv_subrev_u32 v14, 64, v14\ns_waitcnt lgkmcnt(0)")
        rd, mf = reads(1 - st), mfmas(st)
        for n, m in enumerate(mf):
            A(m)
            if n < len(rd): A(rd[n])
    A(f"""s_add_u32 s45, s45, 1
s_cmp_lt_u32 s45, 4
s_cbranch_scc1 {name}_loop""")
    A(f"""s_and_b32 s44, s15, 1
s_lshl_b32 s44, s44, 4
s_lshr_b32 s19, s19, s44
s_lshl_b32 s46, s19, 16
s_mov_b32 s47, s46
v_lshlrev_b32 v9, 6, v3
v_lshl_add_u32 v9, v4, 4, v9
v_add_u32 v9, {K2_ST}, v9
v_lshlrev_b32 v10, 5, v3
v_lshrrev_b32 v11, 1, v4
v_lshl_add_u32 v10, v11, 4, v10
v_and_b32 v11, 1, v4
v_lshlrev_b32 v11, 3, v11
v_sub_u32 v10, v10, v11
s_add_u32 s44, s17, {4*KP+512+8}
v_add_u32 v10, s44, v10
s_waitcnt lgkmcnt(0)
s_barrier""")
    M, RS, U = 48, 80, 112
    for j in range(8):
        A(f"ds_read_b128 v[{M+4*j}:{M+4*j+3}], v9 offset:{1024*j}")
        A(f"ds_read_b128 v[{RS+4*j}:{RS+4*j+3}], v9 offset:{8192+1024*j}")
        A(f"ds_read_b64 v[{U+2*j}:{U+2*j+1}], v10 offset:{512*j}")
    A("""v_lshlrev_b32 v11, 5, v3
v_and_b32 v12, 1, v4
v_lshl_add_u32 v11, v12, 9, v11
v_lshrrev_b32 v12, 1, v4
v_lshl_add_u32 v11, v12, 4, v11
s_waitcnt vmcnt(0)""")
    T, HO = 128, 144
    for j in range(8):
        A(f"s_waitcnt lgkmcnt({min(15, 21 - 3*j)})")
        uf, xf = T, T + 4
        unpack_hi(A, uf + 0, U + 2*j + 1); unpack_lo(A, uf + 1, U + 2*j + 1)
        unpack_hi(A, uf + 2, U + 2*j); unpack_lo(A, uf + 3, U + 2*j)
        unpack_lo(A, xf + 0, XR + 2*j); unpack_hi(A, xf + 1, XR + 2*j)
        unpack_lo(A, xf + 2, XR + 2*j + 1); unpack_hi(A, xf + 3, XR + 2*j + 1)
        for p in range(2):
            ac = ACC + 4*j + 2*p
            A(f"v_pk_fma_f32 v[{ac}:{ac+1}], v[{uf+2*p}:{uf+2*p+1}], s[46:47], v[{ac}:{ac+1}]")
            A(f"v_pk_add_f32 v[{T+8+2*p}:{T+9+2*p}], v[{xf+2*p}:{xf+2*p+1}], v[{M+4*j+2*p}:{M+4*j+2*p+1}] neg_lo:[0,1] neg_hi:[0,1]")
            A(f"v_pk_mul_f32 v[{T+8+2*p}:{T+9+2*p}], v[{T+8+2*p}:{T+9+2*p}], v[{RS+4*j+2*p}:{RS+4*j+2*p+1}]")
            A(f"v_pk_fma_f32 v[{ac}:{ac+1}], v[{T+8+2*p}:{T+9+2*p}], v[{ac}:{ac+1}], v[{xf+2*p}:{xf+2*p+1}]")
        ho = HO + 4 * (j >> 1) + 2 * (j & 1)
        for p in range(2):
            ac = ACC + 4*j + 2*p
            A(f"v_cvt_pk_bf16_f32 v{ho+p}, v{ac}, v{ac+1}")
        if j & 1:
            h4 = HO + 4 * (j >> 1)
            A(f"""s_nop 1
v_permlane16_swap_b32 v{h4}, v{h4+2}
v_permlane16_swap_b32 v{h4+1}, v{h4+3}""")
            A(f"buffer_store_dwordx4 v[{h4}:{h4+3}], v11, s[32:35], 0 offen offset:{1024*(j>>1)}")
    A("s_endpgm")
    A.label(f"{name}_sp")
    A(f"""s_sub_u32 s14, s14, 4
s_lshl_b32 s15, s14, 12
s_waitcnt lgkmcnt(0)""")
    srd(A, 20, 12, 16384, WS_ST1)
    A(f"s_add_u32 m0, s15, {K2_ST}\ns_nop 0")
    for it in range(4): A(f"buffer_load_dwordx4 v5, s[20:23], s15 offen offset:{1024*it} lds")
    A(f"""s_cmp_ge_u32 s2, 224
s_cbranch_scc1 {name}_spdone""")
    srd(A, 24, 8, 1024*7168)
    srd(A, 28, 12, 16*458752, WS_W1P)
    srd(A, 32, 12, 4*3584*4, WS_CS)
    A(f"""s_mul_i32 s16, s2, 1171
s_lshr_b32 s16, s16, 16
s_mul_i32 s17, s16, 56
s_sub_u32 s17, s2, s17
s_lshl_b32 s18, s16, 8
s_lshl_b32 s19, s14, 6
s_add_u32 s18, s18, s19
s_mul_i32 s18, s18, 7168
s_lshl_b32 s19, s17, 7
s_add_u32 s18, s18, s19
v_lshrrev_b32 v6, 3, v1
v_mul_u32_u24 v7, 7168, v6
v_and_b32 v6, 6, v6
v_and_b32 v8, 7, v1
v_xor_b32 v8, v8, v6
v_lshl_add_u32 v7, v8, 4, v7
s_lshl_b32 s36, s14, 13
s_add_u32 s36, s36, {K2_W1S}""")
    for n in range(8):
        A(f"s_add_u32 m0, s36, {1024*n}\ns_nop 0\nbuffer_load_dwordx4 v7, s[24:27], s18 offen lds")
        if n < 7: A(f"s_add_u32 s18, s18, {8*7168}")
    A(f"""v_lshrrev_b32 v6, 2, v1
v_lshlrev_b32 v8, 7, v6
v_and_b32 v6, 6, v6
v_lshl_add_u32 v8, v6, 4, v8
v_and_b32 v6, 3, v1
v_lshl_add_u32 v8, v6, 3, v8
v_add_u32 v8, s36, v8
v_xor_b32 v9, 32, v8
v_xor_b32 v10, 64, v8
v_xor_b32 v11, 96, v8
v_mov_b32 v12, 0x3f803f80
s_lshl_b32 s37, s16, 3
s_lshl_b32 s38, s14, 1
s_add_u32 s37, s37, s38
s_mul_i32 s37, s37, 14336""")
    for t in range(4):
        A(f"""s_lshl_b32 s38, s17, 2
s_add_u32 s38, s38, {t}
s_mul_i32 s39, s38, 4682
s_lshr_b32 s39, s39, 16
s_mul_i32 s44, s39, 14
s_sub_u32 s38, s38, s44
s_mul_i32 s39, s39, 458752
s_lshl_b32 s38, s38, 10
s_add_u32 s38, s38, s39
s_add_u32 s{40+t}, s38, s37""")
    FR = 16
    A("v_add_u32 v13, 14336, v5")
    for t in range(4): A(f"v_mov_b32 v{48+t}, 0")
    A("s_waitcnt vmcnt(0)")
    for ks in range(2):
        for t in range(4):
            f = FR + 16*ks + 4*t
            for h in range(2):
                A(f"ds_read_b64_tr_b16 v[{f+2*h}:{f+2*h+1}], v{8+t} offset:{4096*ks+2048*h}")
    for ks in range(2):
        for t in range(4):
            f = FR + 16*ks + 4*t
            A(f"s_waitcnt lgkmcnt({14 - 2*(4*ks+t)})")
            A(f"buffer_store_dwordx4 v[{f}:{f+3}], v{13 if ks else 5}, s[28:31], s{40+t} offen")
            for q in range(4):
                A(f"v_dot2_f32_bf16 v{48+t}, v{f+q}, v12, v{48+t}")
    A(f"""v_lshlrev_b32 v6, 6, v3
v_lshl_add_u32 v6, v4, 2, v6
s_lshl_b32 s38, s14, 4
s_add_u32 s38, s38, {K2_P}
v_add_u32 v6, s38, v6
s_nop 1""")
    for t in range(4): A(f"ds_write_b32 v6, v{48+t} offset:{1024*t}")
    A(f"""s_waitcnt lgkmcnt(0)
s_barrier
s_cmp_lg_u32 s14, 0
s_cbranch_scc1 {name}_end
v_lshlrev_b32 v6, 6, v1
v_add_u32 v6, {K2_P}, v6""")
    for q in range(4): A(f"ds_read_b128 v[{16+4*q}:{19+4*q}], v6 offset:{16*q}")
    A(f"""s_mul_i32 s38, s16, {3584*4}
s_lshl_b32 s39, s17, 8
s_add_u32 s38, s38, s39
v_lshlrev_b32 v7, 2, v1
s_waitcnt lgkmcnt(0)""")
    for q in range(4): A(f"v_pk_add_f32 v[{16+4*q}:{17+4*q}], v[{16+4*q}:{17+4*q}], v[{18+4*q}:{19+4*q}]")
    A("""v_pk_add_f32 v[16:17], v[16:17], v[20:21]
v_pk_add_f32 v[24:25], v[24:25], v[28:29]
v_pk_add_f32 v[16:17], v[16:17], v[24:25]
v_add_f32 v16, v16, v17
buffer_store_dword v16, v7, s[32:35], s38 offen
s_endpgm""")
    A.label(f"{name}_spdone")
    A("s_waitcnt vmcnt(0)\ns_barrier")
    A.label(f"{name}_end")
    A("s_endpgm")
    return A.text(), 232
```

```python
from asmlib import *
from k12 import *

SLOT = 22528
ND = 7
K4_T = ND * SLOT
K4_STAT = K4_T
K4_CS = K4_T + 1024
K4_B1 = K4_CS + 896
K4_LDS = K4_B1 + 896

def wg_map4(A):
    A("""s_and_b32 s15, s2, 1
s_lshl_b32 s15, s15, 3
s_lshr_b32 s17, s2, 3
s_and_b32 s18, s17, 7
s_add_u32 s15, s15, s18
s_lshr_b32 s16, s2, 1
s_and_b32 s16, s16, 3
s_lshl_b32 s16, s16, 2
s_lshr_b32 s17, s17, 3
s_add_u32 s16, s16, s17""")

def gen_k4(name, opts):
    A = Asm()
    A.label(name)
    A(f"""s_cmp_ge_u32 s2, 256
s_cbranch_scc1 {name}_end
s_load_dwordx2 s[8:9], s[0:1], 64
s_load_dwordx2 s[12:13], s[0:1], 104
v_lshrrev_b32 v2, 6, v0
v_and_b32 v1, 63, v0
v_readfirstlane_b32 s14, v2
v_and_b32 v3, 15, v1
v_lshrrev_b32 v4, 4, v1
v_lshlrev_b32 v5, 4, v1""")
    wg_map4(A)
    A("""v_lshrrev_b32 v6, 2, v1
v_lshlrev_b32 v7, 8, v6
v_and_b32 v6, 7, v6
v_lshl_add_u32 v7, v6, 5, v7
v_and_b32 v6, 3, v1
v_lshl_add_u32 v7, v6, 3, v7
v_add_u32 v7, 14336, v7""")
    A(f"""s_cmp_ge_u32 s14, 4
s_cbranch_scc1 {name}_help""")
    ACC = 16
    FS = [128, 172]
    CA = 216
    RA = 224
    A(f"""s_and_b32 s18, s14, 1
s_lshr_b32 s19, s14, 1
s_lshl_b32 s20, s18, 7
v_xor_b32 v{CA+2}, s20, v7
v_xor_b32 v{CA+3}, 32, v{CA+2}
v_xor_b32 v{CA+4}, 64, v{CA+2}
v_xor_b32 v{CA+5}, 96, v{CA+2}
s_lshl_b32 s20, s19, 13
v_add_u32 v{CA}, s20, v5
s_lshl_b32 s20, s19, 10
s_add_u32 s20, s20, 6144
v_add_u32 v{CA+1}, s20, v5""")
    for j in range(112): A(f"v_mov_b32 v{ACC+j}, 0")
    def reads(st):
        W, H = FS[st], FS[st] + 28
        out = []
        order = [("H", 0), ("W", 0), ("H", 1), ("W", 1), ("H", 2), ("W", 2), ("H", 3), ("W", 3), ("W", 4), ("W", 5), ("W", 6)]
        for kind, i in order:
            if kind == "H":
                out.append(f"ds_read_b64_tr_b16 v[{H+4*i}:{H+4*i+1}], v{RA+2+i}")
                out.append(f"ds_read_b64_tr_b16 v[{H+4*i+2}:{H+4*i+3}], v{RA+2+i} offset:4096")
            elif i < 6:
                out.append(f"ds_read_b128 v[{W+4*i}:{W+4*i+3}], v{RA} offset:{1024*i}")
            else:
                out.append(f"ds_read_b128 v[{W+4*i}:{W+4*i+3}], v{RA+1}")
        return out
    def mfmas(st):
        W, H = FS[st], FS[st] + 28
        out = []
        for ft in range(7):
            for t in range(4):
                c = ACC + 4 * (4 * ft + t)
                out.append(f"v_mfma_f32_16x16x32_bf16 v[{c}:{c+3}], v[{W+4*ft}:{W+4*ft+3}], v[{H+4*t}:{H+4*t+3}], v[{c}:{c+3}]")
        return out
    def addr_update():
        return [f"v_add_u32 v{RA+i}, s21, v{CA+i}" for i in range(6)]
    def slot_adv():
        return f"s_add_u32 s21, s21, {SLOT}\ns_cmp_eq_u32 s21, {ND*SLOT}\ns_cselect_b32 s21, 0, s21"
    def stage(st, rd=True, bar=True):
        if bar: A("s_barrier")
        mf = mfmas(st)
        extra = []
        if rd:
            au = addr_update()
            extra = [au[2] + "\n" + au[0], au[3] + "\n" + au[4], au[5] + "\n" + au[1]] + reads(1 - st) + [slot_adv()]
        for n, m in enumerate(mf):
            A(m)
            if n < len(extra): A(extra[n])
        if rd: A("s_waitcnt lgkmcnt(0)")
    A("s_mov_b32 s21, 0")
    for x in addr_update(): A(x)
    A(f"s_mov_b32 s21, {SLOT}")
    A("s_barrier")
    for r in reads(0): A(r)
    A("s_mov_b32 s22, 0\ns_waitcnt lgkmcnt(0)")
    A.label(f"{name}_cloop")
    stage(0); stage(1)
    A(f"""s_add_u32 s22, s22, 1
s_cmp_lt_u32 s22, 15
s_cbranch_scc1 {name}_cloop""")
    stage(0); stage(1, rd=False, bar=False)
    srd(A, 24, 12, 128 * 114688, WS_H1P)
    TS, TC, TB = 128, 136, 164
    A(f"""s_lshl_b32 s20, s18, 9
s_add_u32 s20, s20, {K4_STAT}
v_lshl_add_u32 v8, v3, 3, s20
s_lshl_b32 s20, s19, 9
s_add_u32 s20, s20, {K4_CS}
v_lshl_add_u32 v9, v4, 4, s20
s_lshl_b32 s20, s19, 6
s_add_u32 s20, s20, {K4_CS + 384}
v_lshl_add_u32 v10, v4, 4, s20
s_lshl_b32 s20, s15, 3
s_lshl_b32 s23, s18, 2
s_add_u32 s20, s20, s23
s_mul_i32 s20, s20, 114688
s_mul_i32 s23, s16, 7168
s_add_u32 s20, s20, s23
s_lshl_b32 s23, s19, 12
v_add_u32 v11, s23, v5
s_lshl_b32 s23, s19, 3
s_add_u32 s23, s23, 3072
v_add_u32 v12, s23, v5
s_barrier""")
    for t in range(4): A(f"ds_read_b64 v[{TS+2*t}:{TS+2*t+1}], v8 offset:{128*t}")
    for ft in range(7):
        if ft < 6:
            A(f"ds_read_b128 v[{TC+4*ft}:{TC+4*ft+3}], v9 offset:{64*ft}")
            A(f"ds_read_b128 v[{TB+4*ft}:{TB+4*ft+3}], v9 offset:{896+64*ft}")
        else:
            A(f"ds_read_b128 v[{TC+4*ft}:{TC+4*ft+3}], v10")
            A(f"ds_read_b128 v[{TB+4*ft}:{TB+4*ft+3}], v10 offset:896")
    A("s_waitcnt lgkmcnt(0)")
    TMP, PK = 192, 200
    for t in range(4):
        st_ = TS + 2 * t
        for ft in range(7):
            c = ACC + 4 * (4 * ft + t)
            tm = TMP + 4 * (ft & 1)
            for p in range(2):
                A(f"v_pk_fma_f32 v[{tm+2*p}:{tm+2*p+1}], v[{TC+4*ft+2*p}:{TC+4*ft+2*p+1}], v[{st_}:{st_+1}], v[{TB+4*ft+2*p}:{TB+4*ft+2*p+1}] op_sel:[0,1,0] op_sel_hi:[1,1,1]")
            for p in range(2):
                A(f"v_pk_fma_f32 v[{c+2*p}:{c+2*p+1}], v[{c+2*p}:{c+2*p+1}], v[{st_}:{st_+1}], v[{tm+2*p}:{tm+2*p+1}] op_sel:[0,0,0] op_sel_hi:[1,0,1]")
            for q in range(4):
                A(f"v_max_f32 v{c+q}, 0, v{c+q}")
            for p in range(2):
                A(f"v_pk_mul_f32 v[{c+2*p}:{c+2*p+1}], v[{c+2*p}:{c+2*p+1}], v[{c+2*p}:{c+2*p+1}]")
            pk = PK + 16 * (t & 1) + 2 * ft
            for p in range(2):
                A(f"v_cvt_pk_bf16_f32 v{pk+p}, v{c+2*p}, v{c+2*p+1}")
            if ft & 1:
                A(f"buffer_store_dwordx4 v[{pk-2}:{pk+1}], v11, s[24:27], s20 offen offset:{1024*(ft>>1)}")
            if ft == 6:
                A(f"buffer_store_dwordx2 v[{pk}:{pk+1}], v12, s[24:27], s20 offen")
        if t < 3: A("s_add_u32 s20, s20, 114688")
    A("s_endpgm")
    A.label(f"{name}_help")
    A(f"""s_sub_u32 s14, s14, 4
s_mul_i32 s17, s16, 458752
s_waitcnt lgkmcnt(0)
s_add_u32 s17, s17, {WS_W1P}""")
    srd(A, 24, 12, 458752, "s17")
    srd(A, 28, 12, 4 << 20, WS_HT)
    A(f"""s_lshl_b32 s18, s14, 2
s_mul_i32 s19, s14, 3
s_add_u32 s19, s19, 2
s_min_u32 s18, s18, s19
s_lshl_b32 s18, s18, 10
v_add_u32 v8, s18, v5
s_lshl_b32 s19, s14, 11
s_add_u32 s19, s19, 14336
s_lshl_b32 s20, s14, 15
s_lshl_b32 s23, s15, 8
s_add_u32 s20, s20, s23
v_lshlrev_b32 v9, 12, v4
v_lshlrev_b32 v11, 1, v4
v_xor_b32 v11, v11, v3
v_lshl_add_u32 v9, v11, 4, v9
v_add_u32 v9, s20, v9
v_xor_b32 v10, 128, v9
v_add_u32 v10, {4*4096-1024}, v10
s_lshl_b32 s20, s14, 6
v_xor_b32 v12, s20, v7
v_xor_b32 v13, 32, v12
v_mov_b32 v14, 0x3f803f80
v_mov_b32 v16, 0
v_mov_b32 v17, 0
v_mov_b32 v18, 0
v_mov_b32 v19, 0
s_mov_b32 s32, 0
s_mov_b32 s33, 0
s_mov_b32 s34, 0
s_mov_b32 s35, 0""")
    srd(A, 36, 12, 4 * 3584 * 4, WS_CS)
    srd(A, 40, 8, 3584 * 2)
    A(f"""s_mul_i32 s20, s16, 896
s_mul_i32 s23, s16, 448
v_lshlrev_b32 v22, 3, v1
s_add_u32 s44, s20, {3584*4}
s_add_u32 s45, s20, {2*3584*4}
s_add_u32 s46, s20, {3*3584*4}
buffer_load_dwordx4 v[32:35], v5, s[36:39], s20 offen
buffer_load_dwordx4 v[36:39], v5, s[36:39], s44 offen
buffer_load_dwordx4 v[40:43], v5, s[36:39], s45 offen
buffer_load_dwordx4 v[44:47], v5, s[36:39], s46 offen
buffer_load_dwordx2 v[48:49], v22, s[40:43], s23 offen""")
    def tables():
        A(f"""v_pk_add_f32 v[32:33], v[32:33], v[36:37]
v_pk_add_f32 v[34:35], v[34:35], v[38:39]
v_pk_add_f32 v[40:41], v[40:41], v[44:45]
v_pk_add_f32 v[42:43], v[42:43], v[46:47]
v_pk_add_f32 v[32:33], v[32:33], v[40:41]
v_pk_add_f32 v[34:35], v[34:35], v[42:43]
v_lshlrev_b32 v36, 16, v48
v_and_b32 v37, 0xffff0000, v48
v_lshlrev_b32 v38, 16, v49
v_and_b32 v39, 0xffff0000, v49
v_add_u32 v22, {K4_CS}, v5
v_cmp_gt_u32 vcc, 56, v1
s_and_saveexec_b64 s[48:49], vcc
ds_write_b128 v22, v[32:35]
ds_write_b128 v22, v[36:39] offset:896
s_mov_b64 exec, s[48:49]""")
    for cls in range(2):
        nW = 4 - cls
        n = nW + 2
        L = f"{name}_h{cls}"
        if cls == 0:
            A(f"s_cmp_ge_u32 s14, 2\ns_cbranch_scc1 {name}_h1")
        A.label(L)
        def issue():
            A(f"s_add_u32 m0, s32, s18\ns_add_u32 s50, s32, s19")
            for i in range(nW):
                A(f"buffer_load_dwordx4 v8, s[24:27], s33 offen offset:{1024*i} lds")
            A("s_mov_b32 m0, s50\ns_add_u32 s33, s33, 14336")
            A("buffer_load_dwordx4 v9, s[28:31], s34 offen lds")
            A("buffer_load_dwordx4 v10, s[28:31], s34 offen offset:1024 lds")
            A(f"s_add_u32 s34, s34, 131072\ns_add_u32 s32, s32, {SLOT}\ns_cmp_eq_u32 s32, {ND*SLOT}\ns_cselect_b32 s32, 0, s32")
        def stats():
            A(f"""v_add_u32 v20, s35, v12
v_add_u32 v21, s35, v13
s_add_u32 s35, s35, {SLOT}
s_cmp_eq_u32 s35, {ND*SLOT}
s_cselect_b32 s35, 0, s35
ds_read_b64_tr_b16 v[24:25], v20
ds_read_b64_tr_b16 v[26:27], v20 offset:4096
ds_read_b64_tr_b16 v[28:29], v21
ds_read_b64_tr_b16 v[30:31], v21 offset:4096
s_waitcnt lgkmcnt(2)""")
            for q in range(4):
                A(f"v_dot2_f32_bf16 v16, v{24+q}, v14, v16\nv_dot2_f32_bf16 v17, v{24+q}, v{24+q}, v17")
            A("s_waitcnt lgkmcnt(0)")
            for q in range(4):
                A(f"v_dot2_f32_bf16 v18, v{28+q}, v14, v18\nv_dot2_f32_bf16 v19, v{28+q}, v{28+q}, v19")
        for s_ in range(ND): issue()
        A(f"s_waitcnt vmcnt({ND*n})")
        tables()
        A(f"s_waitcnt vmcnt({(ND-1)*n})\ns_barrier")
        stats()
        A("s_mov_b32 s22, 0")
        A.label(f"{L}_loop")
        A(f"s_waitcnt vmcnt({(ND-2)*n})\ns_barrier")
        issue()
        stats()
        A(f"""s_add_u32 s22, s22, 1
s_cmp_lt_u32 s22, {32-ND}
s_cbranch_scc1 {L}_loop""")
        for s_ in range(32 - ND, 31):
            A(f"s_waitcnt vmcnt({(31-(s_+1))*n})\ns_barrier")
            if s_ == 32 - ND:
                pass
            stats()
        if cls == 0: A(f"s_branch {name}_hfin")
    A.label(f"{name}_hfin")
    A.label(f"{name}_hst")
    A("""v_mov_b32 v24, v16
v_mov_b32 v25, v17
v_mov_b32 v26, v18
v_mov_b32 v27, v19
s_nop 1""")
    for q in range(4): A(f"v_permlane16_swap_b32 v{16+q}, v{24+q}")
    for q in range(4): A(f"v_add_f32 v{16+q}, v{16+q}, v{24+q}")
    for q in range(4): A(f"v_mov_b32 v{24+q}, v{16+q}")
    A("s_nop 1")
    for q in range(4): A(f"v_permlane32_swap_b32 v{16+q}, v{24+q}")
    for q in range(4): A(f"v_add_f32 v{16+q}, v{16+q}, v{24+q}")
    A(f"""v_and_b32 v22, 16, v1
v_cmp_eq_u32 vcc, 0, v22
s_mov_b32 s20, 0x3a800000
s_nop 0
v_cndmask_b32 v16, v18, v16, vcc
v_cndmask_b32 v17, v19, v17, vcc
v_mul_f32 v16, s20, v16
v_mul_f32 v17, s20, v17
v_fma_f32 v17, -v16, v16, v17
v_max_f32 v17, 0, v17
v_cvt_pk_bf16_f32 v18, v16, v17
v_lshlrev_b32 v16, 16, v18
v_and_b32 v17, 0xffff0000, v18
v_add_f32 v17, 0x3727c5ac, v17
v_cvt_pk_bf16_f32 v17, v17, v17
v_lshlrev_b32 v17, 16, v17
v_sqrt_f32 v17, v17
s_nop 0
v_cvt_pk_bf16_f32 v17, v17, v17
v_lshlrev_b32 v17, 16, v17
v_rcp_f32 v18, v17
s_lshl_b32 s20, s14, 8
s_add_u32 s20, s20, {K4_STAT}
v_mul_f32 v19, -v16, v18
v_and_b32 v22, 31, v1
v_lshl_add_u32 v22, v22, 3, s20
ds_write_b64 v22, v[18:19]
s_waitcnt lgkmcnt(0)
s_barrier""")
    A.label(f"{name}_end")
    A("s_endpgm")
    return A.text(), 232

NS = 20
K5_H = NS * 4096
K5_LDS = K5_H + 16384
def gen_k5(name, opts):
    A = Asm()
    R = 16
    A.label(name)
    A(f"""s_cmp_ge_u32 s2, 256
s_cbranch_scc1 {name}_end
s_load_dwordx4 s[4:7], s[0:1], 72
s_load_dwordx2 s[8:9], s[0:1], 88
s_load_dwordx2 s[12:13], s[0:1], 104
v_lshrrev_b32 v2, 6, v0
v_and_b32 v1, 63, v0
v_readfirstlane_b32 s14, v2
v_and_b32 v3, 15, v1
v_lshrrev_b32 v4, 4, v1
v_lshlrev_b32 v5, 4, v1
s_and_b32 s15, s2, 3
s_lshl_b32 s15, s15, 2
s_lshr_b32 s17, s2, 3
s_and_b32 s18, s17, 3
s_add_u32 s15, s15, s18
s_lshr_b32 s16, s2, 2
s_and_b32 s16, s16, 1
s_lshl_b32 s16, s16, 3
s_lshr_b32 s17, s17, 2
s_add_u32 s16, s16, s17""")
    A(f"""s_lshl_b32 s17, s15, 3
s_lshl_b32 s18, s14, 1
s_add_u32 s17, s17, s18
s_mul_i32 s17, s17, 114688
s_add_u32 s17, s17, {WS_H1P}
v_add_u32 v6, 114688, v5
v_lshrrev_b32 v8, 3, v1
v_lshlrev_b32 v7, 11, v8
v_and_b32 v8, 6, v8
v_and_b32 v9, 7, v1
v_xor_b32 v8, v8, v9
v_lshl_add_u32 v7, v8, 4, v7
s_lshl_b32 s18, s14, 14
s_lshl_b32 s19, s16, 7
s_add_u32 s18, s18, s19
v_add_u32 v7, s18, v7
s_lshl_b32 s19, s14, 10
s_waitcnt lgkmcnt(0)""")
    srd(A, 20, 12, 2 * 114688, "s17")
    srd(A, 24, 4, 3584 * 2048)
    HR = 64
    WF = [192, 208]
    ACC = 16
    CA, RA = 48, 52
    B2 = 56
    A("s_mov_b32 s28, 0\ns_mov_b32 s29, 0\ns_mov_b32 s30, s19")
    def issue(j):
        out = []
        r = HR + 8 * (j % R)
        out.append(f"buffer_load_dwordx4 v[{r}:{r+3}], v5, s[20:23], s28 offen offset:{1024*(j&3)}")
        out.append(f"buffer_load_dwordx4 v[{r+4}:{r+7}], v6, s[20:23], s28 offen offset:{1024*(j&3)}")
        x = "s_mov_b32 m0, s30\n" if (j & 3) == 0 else f"s_add_u32 m0, s30, {4096*(j&3)}\n"
        x += "s_nop 0\n" + "buffer_load_dwordx4 v7, s[24:27], s29 offen lds\ns_add_u32 s29, s29, 65536"
        if (j & 3) == 3:
            x += f"\ns_add_u32 s28, s28, 4096\ns_add_u32 s30, s30, 16384\ns_cmp_ge_u32 s30, {NS*4096}\ns_cselect_b32 s30, s19, s30"
        out.append(x)
        return out
    for j in range(R):
        for x in issue(j): A(x)
    A(f"""v_lshrrev_b32 v8, 2, v1
v_lshlrev_b32 v{CA}, 7, v8
v_and_b32 v9, 6, v8
v_lshl_add_u32 v{CA}, v9, 4, v{CA}
v_and_b32 v9, 3, v1
v_lshl_add_u32 v{CA}, v9, 3, v{CA}
v_xor_b32 v{CA+1}, 32, v{CA}
v_xor_b32 v{CA+2}, 64, v{CA}
v_xor_b32 v{CA+3}, 96, v{CA}""")
    for q in range(4): A(f"v_mov_b32 v{RA+q}, v{CA+q}")
    for j in range(32): A(f"v_mov_b32 v{ACC+j}, 0")
    A("s_mov_b32 s31, 16384")
    def reads(j):
        W = WF[j & 1]
        return [f"ds_read_b64_tr_b16 v[{W+4*t+2*h}:{W+4*t+2*h+1}], v{RA+t} offset:{4096*(j&3)+2048*h}" for t in range(4) for h in range(2)]
    def mfmas(j):
        W = WF[j & 1]; r = HR + 8 * (j % R)
        return [f"v_mfma_f32_16x16x32_bf16 v[{ACC+8*t+4*e}:{ACC+8*t+4*e+3}], v[{W+4*t}:{W+4*t+3}], v[{r+4*e}:{r+4*e+3}], v[{ACC+8*t+4*e}:{ACC+8*t+4*e+3}]" for t in range(4) for e in range(2)]
    A(f"s_waitcnt vmcnt({3*(R-4)})\ns_barrier")
    for x in reads(0): A(x)
    def body(tail):
        for j in range(R):
            last = tail and j == R - 1
            def after_h1b(jj):
                if not tail: return 1 + 3 * (R - 1)
                return 1 + 3 * (R - 1 - jj) + 8
            def after_dma(jj):
                if not tail: return 3 * (j - 1 + R - jj)
                return 3 * (R - 1 - jj) + 8
            w = after_h1b(j)
            bar = (j & 3) == 3 and not last
            if bar: w = min(w, after_dma(j + 4))
            A(f"s_waitcnt vmcnt({w}) lgkmcnt(0)")
            if bar:
                A("s_barrier")
                for q in range(4): A(f"v_add_u32 v{RA+q}, s31, v{CA+q}")
                A(f"s_add_u32 s31, s31, 16384\ns_cmp_eq_u32 s31, {NS*4096}\ns_cselect_b32 s31, 0, s31")
            rd = [] if last else reads(j + 1)
            mf = mfmas(j)
            for n, m in enumerate(mf):
                A(m)
                if n < len(rd): A(rd[n])
            if not tail:
                for x in issue(j): A(x)
    A("s_mov_b32 s33, 0")
    A.label(f"{name}_loop")
    body(False)
    A(f"""s_add_u32 s33, s33, 1
s_cmp_lt_u32 s33, 6
s_cbranch_scc1 {name}_loop""")
    srd(A, 36, 12, 4 << 20, WS_HT)
    srd(A, 40, 6, 2048)
    A(f"""s_lshl_b32 s17, s16, 6
s_lshl_b32 s18, s14, 4
s_add_u32 s17, s17, s18
s_lshl_b32 s17, s17, 12
s_lshl_b32 s18, s15, 8
s_add_u32 s17, s17, s18
v_lshlrev_b32 v8, 12, v4
v_lshlrev_b32 v9, 1, v4
v_xor_b32 v9, v9, v3
v_lshl_add_u32 v8, v9, 4, v8
v_xor_b32 v9, 128, v8
v_add_u32 v9, {4*4096-1024}, v9
s_lshl_b32 s18, s14, 12
s_add_u32 m0, s18, {K5_H}
s_add_u32 s18, s17, {8*4096-2048}
buffer_load_dwordx4 v8, s[36:39], s17 offen lds
buffer_load_dwordx4 v9, s[36:39], s17 offen offset:1024 lds
buffer_load_dwordx4 v8, s[36:39], s18 offen offset:2048 lds
buffer_load_dwordx4 v9, s[36:39], s18 offen offset:3072 lds
v_lshlrev_b32 v10, 3, v4
s_lshl_b32 s18, s16, 7""")
    for t in range(4):
        A(f"buffer_load_dwordx2 v[{B2+2*t}:{B2+2*t+1}], v10, s[40:43], s18 offen offset:{32*t}")
    body(True)
    srd(A, 44, 8, 4 << 20)
    HT = 64
    A(f"""v_lshrrev_b32 v8, 2, v1
v_lshlrev_b32 v9, 8, v8
v_and_b32 v8, 7, v8
v_lshl_add_u32 v9, v8, 5, v9
v_and_b32 v8, 3, v1
v_lshl_add_u32 v9, v8, 3, v9
s_lshl_b32 s18, s14, 6
v_xor_b32 v9, s18, v9
v_add_u32 v9, {K5_H}, v9
v_xor_b32 v10, 32, v9
s_lshl_b32 s17, s15, 7
s_lshl_b32 s18, s14, 5
s_add_u32 s17, s17, s18
s_lshl_b32 s17, s17, 11
s_lshl_b32 s18, s16, 7
s_add_u32 s17, s17, s18
s_add_u32 s18, s17, 32768
v_lshlrev_b32 v11, 11, v3
v_and_b32 v12, 1, v4
v_lshl_add_u32 v11, v12, 5, v11
v_lshrrev_b32 v12, 1, v4
v_lshl_add_u32 v11, v12, 4, v11
s_waitcnt vmcnt(0)
s_barrier""")
    for e in range(2):
        for t in range(4):
            A(f"ds_read_b64_tr_b16 v[{HT+8*e+2*t}:{HT+8*e+2*t+1}], v{9+e} offset:{4096*t}")
    BF = 96
    for t in range(4):
        unpack_lo(A, BF + 4*t, B2 + 2*t); unpack_hi(A, BF + 4*t + 1, B2 + 2*t)
        unpack_lo(A, BF + 4*t + 2, B2 + 2*t + 1); unpack_hi(A, BF + 4*t + 3, B2 + 2*t + 1)
    A("s_waitcnt lgkmcnt(0)")
    T, O = 112, 128
    for e in range(2):
        for t in range(4):
            c = ACC + 8*t + 4*e
            hr = HT + 8*e + 2*t
            unpack_lo(A, T, hr); unpack_hi(A, T+1, hr); unpack_lo(A, T+2, hr+1); unpack_hi(A, T+3, hr+1)
            for p in range(2):
                A(f"v_pk_add_f32 v[{c+2*p}:{c+2*p+1}], v[{c+2*p}:{c+2*p+1}], v[{BF+4*t+2*p}:{BF+4*t+2*p+1}]")
                A(f"v_pk_add_f32 v[{c+2*p}:{c+2*p+1}], v[{c+2*p}:{c+2*p+1}], v[{T+2*p}:{T+2*p+1}]")
            o = O + 8*e + 2*t
            for p in range(2): A(f"v_cvt_pk_bf16_f32 v{o+p}, v{c+2*p}, v{c+2*p+1}")
            if t & 1:
                A(f"""s_nop 1
v_permlane16_swap_b32 v{o-2}, v{o}
v_permlane16_swap_b32 v{o-1}, v{o+1}
buffer_store_dwordx4 v[{o-2}:{o+1}], v11, s[44:47], s{17+e} offen offset:{64*(t>>1)}""")
    A.label(f"{name}_end")
    A("s_endpgm")
    return A.text(), 224, 256
```

```python
import sys, os
sys.path.insert(0, os.path.dirname(__file__))
from asmlib import *
import k12
NAME = "sequential_preLN__ssm_conv_h3__dense_activation_squared_relu__prompt"
REF = f"cdna_kernels/{NAME}.s.ref"

def build(kernels, extra_empty=0):
    head = [l for l in open(REF).read().split("\n") if l.startswith(";") and "@launch" not in l and "Override launch" not in l and "grid=ceil" not in l]
    out = "\n".join(head) + "\n"
    for (lab, txt, vg, blk, lds) in kernels:
        out += f"; @launch kernel={lab} grid=(256,1,1) block=({blk},1,1) lds={lds}\n"
    out += '.amdgcn_target "amdgcn-amd-amdhsa--gfx950"\n.text\n'
    seen = []
    for (lab, txt, vg, blk, lds) in kernels:
        if lab in seen: continue
        seen.append(lab)
        probs = lint(txt)
        for p in probs: print("LINT", lab, p, file=sys.stderr)
        out += f".globl {lab}\n.p2align 8\n.type {lab},@function\n" + txt
    done = []
    for (lab, txt, vg, blk, lds) in kernels:
        if lab in done: continue
        done.append(lab)
        acc = min(256, (vg + 3) // 4 * 4)
        out += KD.format(name=lab, vgpr=vg, sgpr=96, acc=acc)
    return out

def kernels(opts=None):
    opts = opts or {}
    ks = []
    t, vg = k12.gen_k1("k1_prep_kernel"); ks.append(("k1_prep_kernel", t, vg, 512, k12.K1_LDS))
    t, vg = k12.gen_k2("k2_conv_kernel"); ks.append(("k2_conv_kernel", t, vg, 512, k12.K2_LDS))
    try:
        import k45
        t, vg = k45.gen_k4("k4_gemm1_kernel", opts); ks.append(("k4_gemm1_kernel", t, vg, 512, k45.K4_LDS))
        t, vg, blk = k45.gen_k5("k5_gemm2_kernel", opts); ks.append(("k5_gemm2_kernel", t, vg, blk, k45.K5_LDS))
    except ImportError:
        pass
    return ks

if __name__ == "__main__":
    out = sys.argv[1] if len(sys.argv) > 1 else f"cdna_kernels/{NAME}.s"
    opts = dict(kv.split("=") for kv in sys.argv[2:])
    open(out, "w").write(build(kernels(opts)))
    print("wrote", out)
```
